```python
import torch

def _softmax(x, axis=-1):
    return torch.softmax(x, dim=axis)
def _gelu(x):
    return torch.nn.functional.gelu(x, approximate="tanh")
def _silu(x):
    return torch.nn.functional.silu(x)
def _sigmoid(x):
    return torch.sigmoid(x)
def _layernorm(x, axis=-1, eps=1e-5):
    m = x.mean(dim=axis, keepdim=True)
    v = x.var(dim=axis, keepdim=True, unbiased=False)
    return (x - m) / torch.sqrt(v + eps)
def _scatter_add(tgt, idx, src, axis=0):
    return tgt.clone().index_add_(axis, idx, src)
def _segment_sum(src, seg, n):
    out = torch.zeros((n,) + src.shape[1:], dtype=src.dtype)
    return out.index_add_(0, seg, src)
def _pad(x, pw):
    flat = tuple(v for pair in reversed(pw) for v in pair)
    return torch.nn.functional.pad(x, flat)

kernel_name = 'standalone__rezero__prompt'

def setup_inputs():

    _w = (lambda a: (lambda t: t.to(torch.bfloat16) if t.is_floating_point() else t)(torch.as_tensor(a)))
    B, S, D = 4, 2048, 448
    return {
        "x": _w((lambda *s: torch.randn(*s, dtype=torch.bfloat16) * 0.05)(B, S, D)),
        "fx": _w((lambda *s: torch.randn(*s, dtype=torch.bfloat16) * 0.4)(B, S, D)),
        "alpha": _w((lambda *s: torch.randn(*s, dtype=torch.bfloat16) * 0.4)(1) * 0.1),
    }

def reference(x, fx, alpha):
    return x + alpha * fx
```

```python
import sys

NBYTES = 7340032
HEADER = open('standalone__rezero__prompt.s.ref').read().split('; @launch')[0]
K = 'standalone__rezero__prompt_kernel'


def compute_exact(x, f, t, alpha_pair):
    L = []
    for i in range(4):
        xi, fi = x + i, f + i
        L.append(f'v_lshlrev_b32 v{t}, 16, v{fi}')
        L.append(f'v_and_b32 v{t+1}, s15, v{fi}')
        L.append(f'v_lshlrev_b32 v{t+2}, 16, v{xi}')
        L.append(f'v_pk_mul_f32 v[{t}:{t+1}], v[{t}:{t+1}], {alpha_pair} op_sel_hi:[1,0]')
        L.append(f'v_and_b32 v{t+3}, s15, v{xi}')
        L.append(f'v_cvt_pk_bf16_f32 v{fi}, v{t}, v{t+1}')
        L.append(f'v_lshlrev_b32 v{t}, 16, v{fi}')
        L.append(f'v_and_b32 v{t+1}, s15, v{fi}')
        L.append(f'v_pk_add_f32 v[{t}:{t+1}], v[{t}:{t+1}], v[{t+2}:{t+3}]')
        L.append(f'v_cvt_pk_bf16_f32 v{fi}, v{t}, v{t+1}')
    return L


def compute_fma(x, f, t, alpha_pair):
    L = []
    for i in range(4):
        xi, fi = x + i, f + i
        L.append(f'v_lshlrev_b32 v{t}, 16, v{fi}')
        L.append(f'v_and_b32 v{t+1}, s15, v{fi}')
        L.append(f'v_lshlrev_b32 v{t+2}, 16, v{xi}')
        L.append(f'v_and_b32 v{t+3}, s15, v{xi}')
        L.append(f'v_pk_fma_f32 v[{t}:{t+1}], v[{t}:{t+1}], {alpha_pair}, v[{t+2}:{t+3}] op_sel_hi:[1,0,1]')
        L.append(f'v_cvt_pk_bf16_f32 v{fi}, v{t}, v{t+1}')
    return L


def gen(block=256, U=1, layout='wave', ld='', st='', fma=False, xcd=False):
    per_wg = block * 16 * U
    assert NBYTES % per_wg == 0
    grid = NBYTES // per_wg
    L = []
    A = L.append
    A('s_load_dwordx8 s[4:11], s[0:1], 0')
    A(f's_cmp_ge_u32 s2, {grid}')
    A('s_cbranch_scc1 L_END')
    if xcd:
        assert grid % 8 == 0
        A('s_and_b32 s3, s2, 7')
        A(f's_mul_i32 s3, s3, {grid//8}')
        A('s_lshr_b32 s2, s2, 3')
        A('s_add_u32 s2, s2, s3')
    offs = []
    if layout == 'wave':
        A(f's_mul_i32 s3, s2, {per_wg}')
        if U == 1:
            A('v_lshlrev_b32 v0, 4, v0')
            A('v_add_u32 v0, s3, v0')
        else:
            A('v_lshrrev_b32 v1, 6, v0')
            A('v_and_b32 v0, 63, v0')
            A('v_lshlrev_b32 v0, 4, v0')
            A(f'v_mul_u32_u24 v1, {U*1024}, v1')
            if U > 4:
                A('s_add_u32 s3, s3, 4096')
            A('v_add3_u32 v0, v0, v1, s3')
        bias = 4096 if U > 4 else 0
        offs = [(0, u * 1024 - bias) for u in range(U)]
        nadr = 1
    elif layout == 'wg':
        A(f's_mul_i32 s3, s2, {per_wg}')
        A('v_lshlrev_b32 v0, 4, v0')
        A('v_add_u32 v0, s3, v0')
        for u in range(1, U):
            A(f'v_add_u32 v{u}, {u*block*16}, v0')
        offs = [(u, 0) for u in range(U)]
        nadr = U
    elif layout == 'grid':
        A(f's_mul_i32 s3, s2, {block*16}')
        A('v_lshlrev_b32 v0, 4, v0')
        A('v_add_u32 v0, s3, v0')
        for u in range(1, U):
            A(f'v_add_u32 v{u}, {u*grid*block*16}, v0')
        offs = [(u, 0) for u in range(U)]
        nadr = U
    t = (nadr + 1) // 2 * 2
    base = (t + 4 + 3) // 4 * 4
    X = [base + 8 * u for u in range(U)]
    F = [base + 8 * u + 4 for u in range(U)]
    nv = base + 8 * U
    A('s_mov_b32 s15, 0xffff0000')
    A('s_waitcnt lgkmcnt(0)')
    A('s_load_dword s12, s[8:9], 0')
    for u in range(U):
        r, o = offs[u]
        os_ = f' offset:{o}' if o else ''
        A(f'global_load_dwordx4 v[{X[u]}:{X[u]+3}], v{r}, s[4:5]{os_} {ld}'.rstrip())
        A(f'global_load_dwordx4 v[{F[u]}:{F[u]+3}], v{r}, s[6:7]{os_} {ld}'.rstrip())
    A('s_waitcnt lgkmcnt(0)')
    A('s_lshl_b32 s12, s12, 16')
    for u in range(U):
        A(f's_waitcnt vmcnt({2*(U-1-u) + u})')
        comp = compute_fma if fma else compute_exact
        L.extend(comp(X[u], F[u], t, 's[12:13]'))
        r, o = offs[u]
        os_ = f' offset:{o}' if o else ''
        A(f'global_store_dwordx4 v{r}, v[{F[u]}:{F[u]+3}], s[10:11]{os_} {st}'.rstrip())
    A('L_END:')
    A('s_endpgm')
    return wrap(L, grid, block, nv)


def wrap(L, grid, block, nv, nsgpr=24):
    acc = (nv + 3) // 4 * 4
    out = HEADER + f'; @launch grid=({grid},1,1) block=({block},1,1) lds=0\n'
    out += '.amdgcn_target "amdgcn-amd-amdhsa--gfx950"\n.text\n'
    out += f'.globl {K}\n.p2align 8\n.type {K},@function\n{K}:\n'
    for l in L:
        out += (l if l.endswith(':') else '    ' + l) + '\n'
    out += '.section .rodata,"a"\n.p2align 6\n'
    out += f'.amdhsa_kernel {K}\n'
    out += f'  .amdhsa_next_free_vgpr {nv}\n  .amdhsa_next_free_sgpr {nsgpr}\n  .amdhsa_accum_offset {acc}\n'
    out += '  .amdhsa_group_segment_fixed_size 0\n  .amdhsa_kernarg_size 48\n  .amdhsa_user_sgpr_count 2\n'
    out += '  .amdhsa_user_sgpr_kernarg_segment_ptr 1\n  .amdhsa_system_sgpr_workgroup_id_x 1\n'
    out += '  .amdhsa_float_denorm_mode_32 3\n'
    out += '.end_amdhsa_kernel\n'
    return out


if __name__ == '__main__':
    name = sys.argv[1]
    kw = {}
    for a in sys.argv[2:]:
        k, v = a.split('=', 1)
        if k in ('block', 'U'):
            v = int(v)
        elif k in ('fma', 'xcd'):
            v = v in ('1', 'True', 'true')
        else:
            v = v.replace('+', ' ')
        kw[k] = v
    open(name, 'w').write(gen(**kw))
```

```python
import sys

NBYTES = 7340032
HEADER = open('standalone__rezero__prompt.s.ref').read().split('; @launch')[0]
K = 'standalone__rezero__prompt_kernel'


def compute_exact(x, f, t, alpha_pair):
    L = []
    for i in range(4):
        xi, fi = x + i, f + i
        L.append(f'v_lshlrev_b32 v{t}, 16, v{fi}')
        L.append(f'v_and_b32 v{t+1}, s15, v{fi}')
        L.append(f'v_lshlrev_b32 v{t+2}, 16, v{xi}')
        L.append(f'v_pk_mul_f32 v[{t}:{t+1}], v[{t}:{t+1}], {alpha_pair} op_sel_hi:[1,0]')
        L.append(f'v_and_b32 v{t+3}, s15, v{xi}')
        L.append(f'v_cvt_pk_bf16_f32 v{fi}, v{t}, v{t+1}')
        L.append(f'v_lshlrev_b32 v{t}, 16, v{fi}')
        L.append(f'v_and_b32 v{t+1}, s15, v{fi}')
        L.append(f'v_pk_add_f32 v[{t}:{t+1}], v[{t}:{t+1}], v[{t+2}:{t+3}]')
        L.append(f'v_cvt_pk_bf16_f32 v{fi}, v{t}, v{t+1}')
    return L


def compute_fma(x, f, t, alpha_pair):
    L = []
    for i in range(4):
        xi, fi = x + i, f + i
        L.append(f'v_lshlrev_b32 v{t}, 16, v{fi}')
        L.append(f'v_and_b32 v{t+1}, s15, v{fi}')
        L.append(f'v_lshlrev_b32 v{t+2}, 16, v{xi}')
        L.append(f'v_and_b32 v{t+3}, s15, v{xi}')
        L.append(f'v_pk_fma_f32 v[{t}:{t+1}], v[{t}:{t+1}], {alpha_pair}, v[{t+2}:{t+3}] op_sel_hi:[1,0,1]')
        L.append(f'v_cvt_pk_bf16_f32 v{fi}, v{t}, v{t+1}')
    return L


def gen(block=256, U=1, layout='wave', ld='', st='', fma=False, xcd=False, K=0):
    per_wg = block * 16 * U
    assert NBYTES % per_wg == 0
    grid = NBYTES // per_wg
    L = []
    A = L.append
    A('s_load_dwordx8 s[4:11], s[0:1], 0')
    A(f's_cmp_ge_u32 s2, {grid}')
    A('s_cbranch_scc1 L_END')
    if xcd:
        assert grid % 8 == 0
        A('s_and_b32 s3, s2, 7')
        A(f's_mul_i32 s3, s3, {grid//8}')
        A('s_lshr_b32 s2, s2, 3')
        A('s_add_u32 s2, s2, s3')
    offs = []
    if layout == 'wave':
        A(f's_mul_i32 s3, s2, {per_wg}')
        if U == 1:
            A('v_lshlrev_b32 v0, 4, v0')
            A('v_add_u32 v0, s3, v0')
        else:
            A('v_lshrrev_b32 v1, 6, v0')
            A('v_and_b32 v0, 63, v0')
            A('v_lshlrev_b32 v0, 4, v0')
            A(f'v_mul_u32_u24 v1, {U*1024}, v1')
            if U > 4:
                A('s_add_u32 s3, s3, 4096')
            A('v_add3_u32 v0, v0, v1, s3')
        bias = 4096 if U > 4 else 0
        offs = [(0, u * 1024 - bias) for u in range(U)]
        nadr = 1
    elif layout == 'numa':
        assert block == 256 and U in (1, 2, 4)
        A('s_lshr_b32 s3, s2, 3')
        A('s_lshl_b32 s3, s3, 2')
        A('s_and_b32 s16, s2, 3')
        A('s_or_b32 s3, s3, s16')
        A('s_bfe_u32 s16, s2, 0x10002')
        if U == 1:
            A('s_bfe_u32 s17, s3, 0x10008')
            A('s_xor_b32 s16, s16, s17')
            if K: A('s_xor_b32 s16, s16, 1')
            A('s_lshr_b32 s17, s3, 1')
            A('s_lshl_b32 s17, s17, 14')
            A('s_and_b32 s3, s3, 1')
            A('s_lshl_b32 s3, s3, 12')
            A('s_or_b32 s3, s3, s17')
            A('s_lshl_b32 s16, s16, 13')
            A('s_or_b32 s3, s3, s16')
            A('v_lshlrev_b32 v0, 4, v0')
            A('v_add_u32 v0, s3, v0')
        elif U == 2:
            A('s_bfe_u32 s17, s3, 0x10007')
            A('s_xor_b32 s16, s16, s17')
            if K: A('s_xor_b32 s16, s16, 1')
            A('s_lshl_b32 s3, s3, 14')
            A('s_lshl_b32 s16, s16, 13')
            A('s_or_b32 s3, s3, s16')
            A('v_lshrrev_b32 v1, 6, v0')
            A('v_and_b32 v0, 63, v0')
            A('v_lshlrev_b32 v0, 4, v0')
            A('v_lshlrev_b32 v1, 11, v1')
            A('v_add3_u32 v0, v0, v1, s3')
        else:
            A('s_bfe_u32 s17, s3, 0x10006')
            A('s_xor_b32 s16, s16, s17')
            if K: A('s_xor_b32 s16, s16, 1')
            A('s_lshl_b32 s3, s3, 15')
            A('s_lshl_b32 s16, s16, 13')
            A('s_or_b32 s3, s3, s16')
            A('v_lshrrev_b32 v1, 7, v0')
            A('v_lshlrev_b32 v1, 14, v1')
            A('v_and_b32 v2, 64, v0')
            A('v_lshlrev_b32 v2, 6, v2')
            A('v_and_b32 v0, 63, v0')
            A('v_lshlrev_b32 v0, 4, v0')
            A('v_add3_u32 v0, v0, v1, v2')
            A('v_add_u32 v0, s3, v0')
        offs = [(0, u * 1024) for u in range(U)]
        nadr = 1
    elif layout == 'wg':
        A(f's_mul_i32 s3, s2, {per_wg}')
        A('v_lshlrev_b32 v0, 4, v0')
        A('v_add_u32 v0, s3, v0')
        for u in range(1, U):
            A(f'v_add_u32 v{u}, {u*block*16}, v0')
        offs = [(u, 0) for u in range(U)]
        nadr = U
    elif layout == 'grid':
        A(f's_mul_i32 s3, s2, {block*16}')
        A('v_lshlrev_b32 v0, 4, v0')
        A('v_add_u32 v0, s3, v0')
        for u in range(1, U):
            A(f'v_add_u32 v{u}, {u*grid*block*16}, v0')
        offs = [(u, 0) for u in range(U)]
        nadr = U
    t = (nadr + 1) // 2 * 2
    base = (t + 4 + 3) // 4 * 4
    X = [base + 8 * u for u in range(U)]
    F = [base + 8 * u + 4 for u in range(U)]
    nv = base + 8 * U
    A('s_mov_b32 s15, 0xffff0000')
    A('s_waitcnt lgkmcnt(0)')
    A('s_load_dword s12, s[8:9], 0')
    for u in range(U):
        r, o = offs[u]
        os_ = f' offset:{o}' if o else ''
        A(f'global_load_dwordx4 v[{X[u]}:{X[u]+3}], v{r}, s[4:5]{os_} {ld}'.rstrip())
        A(f'global_load_dwordx4 v[{F[u]}:{F[u]+3}], v{r}, s[6:7]{os_} {ld}'.rstrip())
    A('s_waitcnt lgkmcnt(0)')
    A('s_lshl_b32 s12, s12, 16')
    for u in range(U):
        A(f's_waitcnt vmcnt({2*(U-1-u) + u})')
        comp = compute_fma if fma else compute_exact
        L.extend(comp(X[u], F[u], t, 's[12:13]'))
        r, o = offs[u]
        os_ = f' offset:{o}' if o else ''
        stu = st.split(',')[u] if ',' in st else st
        A(f'global_store_dwordx4 v{r}, v[{F[u]}:{F[u]+3}], s[10:11]{os_} {stu}'.rstrip())
    A('L_END:')
    A('s_endpgm')
    return wrap(L, grid, block, nv)


def wrap(L, grid, block, nv, nsgpr=24):
    acc = (nv + 3) // 4 * 4
    out = HEADER + f'; @launch grid=({grid},1,1) block=({block},1,1) lds=0\n'
    out += '.amdgcn_target "amdgcn-amd-amdhsa--gfx950"\n.text\n'
    out += f'.globl {K}\n.p2align 8\n.type {K},@function\n{K}:\n'
    for l in L:
        out += (l if l.endswith(':') else '    ' + l) + '\n'
    out += '.section .rodata,"a"\n.p2align 6\n'
    out += f'.amdhsa_kernel {K}\n'
    out += f'  .amdhsa_next_free_vgpr {nv}\n  .amdhsa_next_free_sgpr {nsgpr}\n  .amdhsa_accum_offset {acc}\n'
    out += '  .amdhsa_group_segment_fixed_size 0\n  .amdhsa_kernarg_size 48\n  .amdhsa_user_sgpr_count 2\n'
    out += '  .amdhsa_user_sgpr_kernarg_segment_ptr 1\n  .amdhsa_system_sgpr_workgroup_id_x 1\n'
    out += '  .amdhsa_float_denorm_mode_32 3\n'
    out += '.end_amdhsa_kernel\n'
    return out


if __name__ == '__main__':
    name = sys.argv[1]
    kw = {}
    for a in sys.argv[2:]:
        k, v = a.split('=', 1)
        if k in ('block', 'U', 'K'):
            v = int(v)
        elif k in ('fma', 'xcd'):
            v = v in ('1', 'True', 'true')
        else:
            v = v.replace('+', ' ')
        kw[k] = v
    open(name, 'w').write(gen(**kw))
```

```python
import sys, re
sys.path.insert(0,'gen')
import gen
from probe import probe
W = lambda n, s: open(f'var/{n}.s','w').write(s)
b = gen.gen(block=896, U=2)
for T in (250,300,350,400,450,500,1600):
    W(f'r_T{T}', probe(b, T))
def amp(base, k, at='end'):
    s = base.replace('    s_load_dwordx8 s[4:11], s[0:1], 0\n', '    s_memrealtime s[16:17]\n    s_load_dwordx8 s[4:11], s[0:1], 0\n')
    lines = s.split('\n')
    if at == 'end':
        j = [i for i,l in enumerate(lines) if l.startswith('L_END:')][0]
        lines[j:j] = ['    s_waitcnt vmcnt(0)', '    s_memrealtime s[22:23]']
    elif at == 'lastload':
        j = [i for i,l in enumerate(lines) if 's_waitcnt vmcnt' in l][-1]
        lines[j+1:j+1] = ['    s_memrealtime s[22:23]']
    elif at == 'firstload':
        j = [i for i,l in enumerate(lines) if 's_waitcnt vmcnt' in l][0]
        lines[j+1:j+1] = ['    s_memrealtime s[22:23]']
    elif at == 'karg':
        j = [i for i,l in enumerate(lines) if 's_waitcnt lgkmcnt(0)' in l][0]
        lines[j+1:j+1] = ['    s_memrealtime s[22:23]']
    s = '\n'.join(lines)
    s = s.replace('L_END:\n', f'''    s_waitcnt vmcnt(0) lgkmcnt(0)
    s_sub_u32 s22, s22, s16
    s_mul_i32 s22, s22, {k}
    s_min_u32 s22, s22, 20000
L_SPIN:
    s_memrealtime s[18:19]
    s_waitcnt lgkmcnt(0)
    s_sub_u32 s20, s18, s16
    s_cmp_lt_u32 s20, s22
    s_cbranch_scc1 L_SPIN
L_END:
''')
    return s
W('r_amp_end', amp(b, 5)); W('r_amp_last', amp(b, 5, 'lastload')); W('r_amp_karg', amp(b, 30, 'karg'))
u1 = gen.gen(block=256, U=1)
W('r_amp_end_u4', amp(gen.gen(block=256, U=4), 5))
W('r_amp_last_u4', amp(gen.gen(block=256, U=4), 5, 'lastload'))
W('r_amp_last_u7', amp(gen.gen(block=256, U=7), 5, 'lastload'))
```

```python
import sys
sys.path.insert(0,'gen')
import gen
def probe(base, T):
    s = base.replace('    s_load_dwordx8 s[4:11], s[0:1], 0\n', '    s_memrealtime s[16:17]\n    s_load_dwordx8 s[4:11], s[0:1], 0\n')
    s = s.replace('L_END:\n', f'''    s_waitcnt vmcnt(0)
L_SPIN:
    s_memrealtime s[18:19]
    s_waitcnt lgkmcnt(0)
    s_sub_u32 s20, s18, s16
    s_cmp_lt_u32 s20, {T}
    s_cbranch_scc1 L_SPIN
L_END:
''')
    return s
if __name__ == '__main__':
    W = lambda n, s: open(f'var/{n}.s','w').write(s)
    W('p_u4', probe(gen.gen(block=256, U=4), 1000))
    W('p_u4_sc1', probe(gen.gen(block=256, U=4, st='sc1'), 1000))
    W('p_u7', probe(gen.gen(block=256, U=7), 1000))
    W('p_u7_sc1', probe(gen.gen(block=256, U=7, st='sc1'), 1000))
    W('p_u1', probe(gen.gen(block=256, U=1), 1000))
    W('p_u1_sc1', probe(gen.gen(block=256, U=1, st='sc1'), 1000))
```

```python
import sys, re
sys.path.insert(0,'gen')
import gen
from exp10 import amp
from probe import probe
W = lambda n, s: open(f'var/{n}.s','w').write(s)
for tag, st in (('p',''),('nt','nt'),('sc1','sc1'),('sc1nt','sc1 nt'),('sc01nt','sc0 sc1 nt'),('sc0nt','sc0 nt')):
    b = gen.gen(block=896, U=2, ld='nt', st=st)
    W(f'z_{tag}', b); W(f'zp_{tag}', probe(b, 800))
for blk,U in ((256,1),(256,2),(256,4),(256,7),(512,1),(512,2),(1024,1),(448,4),(128,7),(64,7)):
    W(f'zg_b{blk}_u{U}', gen.gen(block=blk, U=U, ld='nt'))
W('zg_b256_u4g', gen.gen(block=256, U=4, ld='nt', layout='grid'))
W('zg_b256_u7g', gen.gen(block=256, U=7, ld='nt', layout='grid'))
W('zg_b896_u2g', gen.gen(block=896, U=2, ld='nt', layout='grid'))
W('zg_b896_u2w', gen.gen(block=896, U=2, ld='nt', layout='wg'))
W('zg_b896_u2x', gen.gen(block=896, U=2, ld='nt', xcd=True))
W('zg_b256_u4x', gen.gen(block=256, U=4, ld='nt', xcd=True))
```

```python
import sys, re
sys.path.insert(0,'gen')
import gen
def ts(base, block):
    lines = base.split('\n')
    out = []
    vm = [i for i,l in enumerate(lines) if 's_waitcnt vmcnt' in l]
    first_lgkm = [i for i,l in enumerate(lines) if 's_waitcnt lgkmcnt(0)' in l][0]
    for i,l in enumerate(lines):
        if 's_load_dwordx8 s[4:11]' in l:
            out.append('    s_memrealtime s[24:25]')
            out.append('    s_mov_b32 s40, s2')
            out.append('    v_mov_b32 v100, v0')
            out.append('    s_load_dwordx2 s[36:37], s[0:1], 40')
        if l.startswith('L_END:'):
            out.append('    s_waitcnt vmcnt(0)')
            out.append('    s_memrealtime s[32:33]')
            out.append('    s_getreg_b32 s34, hwreg(HW_REG_HW_ID)')
            out.append('    s_getreg_b32 s35, hwreg(HW_REG_XCC_ID)')
            out.append('    s_waitcnt lgkmcnt(0)')
            out.append(f'    s_mul_i32 s41, s40, {block//64*64}')
            out.append('    v_lshrrev_b32 v101, 6, v100')
            out.append('    v_lshlrev_b32 v101, 6, v101')
            out.append('    v_add_u32 v101, s41, v101')
            out.append('    v_and_b32 v100, 63, v100')
            out.append('    v_cmp_eq_u32 vcc, 0, v100')
            out.append('    s_and_saveexec_b64 s[42:43], vcc')
            for j in range(12):
                out.append(f'    v_mov_b32 v{104+j}, s{24+j}')
            out.append('    global_store_dwordx4 v101, v[104:107], s[36:37]')
            out.append('    global_store_dwordx4 v101, v[108:111], s[36:37] offset:16')
            out.append('    global_store_dwordx4 v101, v[112:115], s[36:37] offset:32')
        out.append(l)
        if i == first_lgkm:
            out.append('    s_memrealtime s[26:27]')
        if i == vm[0]:
            out.append('    s_memrealtime s[28:29]')
        if i == vm[-1]:
            out.append('    s_memrealtime s[30:31]')
    s = '\n'.join(out)
    s = re.sub(r'next_free_vgpr \d+', 'next_free_vgpr 116', s) if False else s
    return s
def ts2(base, block):
    nv = int(re.search(r'next_free_vgpr (\d+)', base).group(1))
    nb = (nv + 3)//4*4
    s = ts(base, block)
    def rep(m):
        return f'v{int(m.group(1))-100+nb}'
    s = re.sub(r'v(1[01]\d)\b', rep, s)
    s = re.sub(r'v\[(1[01]\d):(1[01]\d)\]', lambda m: f'v[{int(m.group(1))-100+nb}:{int(m.group(2))-100+nb}]', s)
    s = re.sub(r'next_free_vgpr \d+', f'next_free_vgpr {nb+16}', s)
    s = re.sub(r'accum_offset \d+', f'accum_offset {nb+16}', s)
    s = re.sub(r'next_free_sgpr \d+', 'next_free_sgpr 48', s)
    return s
if __name__ == '__main__':
    W = lambda n, s: open(f'var/{n}.s','w').write(s)
    W('t_u4', ts2(gen.gen(block=256, U=4), 256))
    W('t_u4_sc1', ts2(gen.gen(block=256, U=4, st='sc1'), 256))
    W('t_u1', ts2(gen.gen(block=256, U=1), 256))
    W('t_u1_sc1', ts2(gen.gen(block=256, U=1, st='sc1'), 256))
    W('t_u7', ts2(gen.gen(block=256, U=7), 256))
    W('t_u7_sc1', ts2(gen.gen(block=256, U=7, st='sc1'), 256))
```

```python
import sys, re
sys.path.insert(0,'gen')
import gen
from probe import probe
from tsprobe import ts2
W = lambda n, s: open(f'var/{n}.s','w').write(s)
LD = (('nt','nt'),('s1n','sc1 nt'),('s01n','sc0 sc1 nt'),('s0n','sc0 nt'))
ST = (('p',''),('nt','nt'),('s0','sc0'),('s0n','sc0 nt'))
for a, ld in LD:
    for c, st in ST:
        W(f'v_{a}_{c}', gen.gen(block=896, U=2, ld=ld, st=st))
W('v_nt_pn', gen.gen(block=896, U=2, ld='nt', st=',nt'))
W('v_nt_np', gen.gen(block=896, U=2, ld='nt', st='nt,'))
W('vt_nt_p', ts2(gen.gen(block=896, U=2, ld='nt'), 896))
W('vt_nt_nt', ts2(gen.gen(block=896, U=2, ld='nt', st='nt'), 896))
```

```python
import sys, re
sys.path.insert(0,'gen')
import gen
def ts3(base, block):
    nv = int(re.search(r'next_free_vgpr (\d+)', base).group(1))
    nb = (nv + 3)//4*4
    lines = base.split('\n')
    out = []
    vm = [i for i,l in enumerate(lines) if 's_waitcnt vmcnt' in l]
    ld = [i for i,l in enumerate(lines) if 'global_load' in l]
    first_lgkm = [i for i,l in enumerate(lines) if 's_waitcnt lgkmcnt(0)' in l][0]
    for i,l in enumerate(lines):
        if 's_load_dwordx8 s[4:11]' in l:
            out.append('    s_memrealtime s[24:25]')
            out.append('    s_mov_b32 s44, s2')
            out.append(f'    v_mov_b32 v{nb}, v0')
            out.append('    s_load_dwordx2 s[40:41], s[0:1], 40')
        if l.startswith('L_END:'):
            out.append('    s_waitcnt vmcnt(0)')
            out.append('    s_memrealtime s[36:37]')
            out.append('    s_getreg_b32 s38, hwreg(HW_REG_HW_ID)')
            out.append('    s_getreg_b32 s39, hwreg(HW_REG_XCC_ID)')
            out.append('    s_waitcnt lgkmcnt(0)')
            out.append('    s_barrier')
            out.append(f'    s_mul_i32 s45, s44, {block//64*64}')
            out.append(f'    v_lshrrev_b32 v{nb+1}, 6, v{nb}')
            out.append(f'    v_lshlrev_b32 v{nb+1}, 6, v{nb+1}')
            out.append(f'    v_add_u32 v{nb+1}, s45, v{nb+1}')
            out.append(f'    v_and_b32 v{nb}, 63, v{nb}')
            out.append(f'    v_cmp_eq_u32 vcc, 0, v{nb}')
            out.append('    s_and_saveexec_b64 s[42:43], vcc')
            for j in range(16):
                out.append(f'    v_mov_b32 v{nb+4+j}, s{24+j}')
            for q in range(4):
                out.append(f'    global_store_dwordx4 v{nb+1}, v[{nb+4+4*q}:{nb+7+4*q}], s[40:41] offset:{16*q}')
        out.append(l)
        if i == first_lgkm: out.append('    s_memrealtime s[26:27]')
        if i == ld[1]: out.append('    s_memrealtime s[28:29]')
        if i == ld[-1]: out.append('    s_memrealtime s[30:31]')
        if i == vm[0]: out.append('    s_memrealtime s[32:33]')
        if i == vm[-1]: out.append('    s_memrealtime s[34:35]')
    s = '\n'.join(out)
    s = re.sub(r'next_free_vgpr \d+', f'next_free_vgpr {nb+20}', s)
    s = re.sub(r'accum_offset \d+', f'accum_offset {nb+20}', s)
    s = re.sub(r'next_free_sgpr \d+', 'next_free_sgpr 48', s)
    return s
if __name__ == '__main__':
    W = lambda n, s: open(f'var/{n}.s','w').write(s)
    W('w_base', ts3(gen.gen(block=896, U=2, ld='nt'), 896))
```

```python
import sys
sys.path.insert(0,'gen')
from gen import wrap
from ts3 import ts3
W = lambda n, s: open(f'var/{n}.s','w').write(s)
def mk(b, st='sc1', sel='cu'):
    L=[]; A=L.append
    A('s_load_dwordx8 s[4:11], s[0:1], 0')
    A('s_cmp_ge_u32 s2, 256')
    A('s_cbranch_scc1 L_END')
    A('s_mul_i32 s3, s2, 28672')
    A('v_lshrrev_b32 v1, 6, v0')
    A('s_nop 1')
    A('v_readfirstlane_b32 s18, v1')
    A('v_and_b32 v0, 63, v0')
    A('v_lshlrev_b32 v0, 4, v0')
    A('v_mul_u32_u24 v1, 2048, v1')
    A('v_add3_u32 v0, v0, v1, s3')
    if sel == 'cu': A('s_bitcmp1_b32 s2, 3')
    else: A('s_bitcmp1_b32 s2, 2')
    A('s_cselect_b32 s14, 1, 0')
    A('s_waitcnt lgkmcnt(0)')
    A('s_cmp_eq_u32 s14, 1')
    A('s_cbranch_scc1 L_B')
    A('L_A:')
    A('global_load_dwordx4 v[8:11], v0, s[4:5] nt')
    A('global_load_dwordx4 v[12:15], v0, s[6:7] nt')
    A('global_load_dwordx4 v[16:19], v0, s[4:5] offset:1024 nt')
    A('global_load_dwordx4 v[20:23], v0, s[6:7] offset:1024 nt')
    A('s_waitcnt vmcnt(2)')
    A('s_waitcnt vmcnt(0)')
    A('s_branch L_FIN')
    A('L_B:')
    if b == 'load':
        A('s_branch L_A')
    elif b in ('store', 'wb'):
        d = 8 if sel == 'cu' else 4
        stm = st if b == 'store' else ''
        A(f'v_subrev_u32 v1, {d*28672}, v0')
        A(f'global_store_dwordx4 v0, v[8:11], s[10:11] {stm}')
        A(f'global_store_dwordx4 v0, v[8:11], s[10:11] offset:1024 {stm}')
        A(f'global_store_dwordx4 v1, v[8:11], s[10:11] {stm}')
        A(f'global_store_dwordx4 v1, v[8:11], s[10:11] offset:1024 {stm}')
        if b == 'wb':
            A('s_waitcnt vmcnt(0)')
            A('s_barrier')
            A('s_cmp_lg_u32 s18, 0')
            A('s_cbranch_scc1 L_FIN')
            if st == 'one':
                A('s_cmp_lt_u32 s2, 248')
                A('s_cbranch_scc1 L_FIN')
            A('buffer_wbl2 sc1')
    A('L_FIN:')
    A('L_END:')
    A('s_endpgm')
    s = wrap(L, 256, 896, 24)
    s = ts3(s, 896)
    s = s.replace('    s_memrealtime s[34:35]\n', '')
    s = s.replace('    s_branch L_FIN\n', '    s_memrealtime s[34:35]\n    s_branch L_FIN\n')
    s = s.replace('L_B:\n', 'L_B:\n    s_mov_b64 s[28:29], s[26:27]\n    s_mov_b64 s[30:31], s[26:27]\n    s_mov_b64 s[32:33], s[26:27]\n    s_mov_b64 s[34:35], s[26:27]\n')
    s = s.replace('L_B:\n', 'L_B:\n    s_waitcnt lgkmcnt(0)\n')
    return s
for sel in ('cu','xcd'):
    W(f'i_{sel}_idle', mk('idle', sel=sel))
    W(f'i_{sel}_load', mk('load', sel=sel))
    W(f'i_{sel}_s1', mk('store', 'sc1', sel))
    W(f'i_{sel}_nt', mk('store', 'nt', sel))
    W(f'i_{sel}_p', mk('store', '', sel))
    W(f'i_{sel}_wb', mk('wb', 'all', sel))
    W(f'i_{sel}_wb1', mk('wb', 'one', sel))
```
